```python
import torch

def _softmax(x, axis=-1):
    return torch.softmax(x, dim=axis)
def _gelu(x):
    return torch.nn.functional.gelu(x, approximate="tanh")
def _silu(x):
    return torch.nn.functional.silu(x)
def _sigmoid(x):
    return torch.sigmoid(x)
def _layernorm(x, axis=-1, eps=1e-5):
    m = x.mean(dim=axis, keepdim=True)
    v = x.var(dim=axis, keepdim=True, unbiased=False)
    return (x - m) / torch.sqrt(v + eps)
def _scatter_add(tgt, idx, src, axis=0):
    return tgt.clone().index_add_(axis, idx, src)
def _segment_sum(src, seg, n):
    out = torch.zeros((n,) + src.shape[1:], dtype=src.dtype)
    return out.index_add_(0, seg, src)
def _pad(x, pw):
    flat = tuple(v for pair in reversed(pw) for v in pair)
    return torch.nn.functional.pad(x, flat)

kernel_name = 'concat_heads__sliding_block_cached__sliding_block_cached__decode'

def setup_inputs():

    _w = (lambda a: (lambda t: t.to(torch.bfloat16) if t.is_floating_point() else t)(torch.as_tensor(a)))
    def _A_setup():
        B, Sq, D = 1, 1, 640
        Hq, Hkv, Sk, Dh = 32, 32, 8192, 192
        assert Hq % Hkv == 0, (Hq, Hkv)
        return {
            "x": _w((lambda *s: torch.randn(*s, dtype=torch.bfloat16) * 0.8)(B, Sq, D)),
            "k_cache": _w((lambda *s: torch.randn(*s, dtype=torch.bfloat16) * 0.8)(B, Hkv, Sk, Dh)),
            "v_cache": _w((lambda *s: torch.randn(*s, dtype=torch.bfloat16) * 0.05)(B, Hkv, Sk, Dh)),
            "wq": _w((lambda *s: torch.randn(*s, dtype=torch.bfloat16) * 0.8)(D, Hq * Dh) * (D ** -0.5)),
            "wo": _w((lambda *s: torch.randn(*s, dtype=torch.bfloat16) * 0.05)(Hq * Dh, D) * ((Hq * Dh) ** -0.5)),
        }
    _A_in = _A_setup()

    def _B_setup():
        B, Sq, D = 1, 1, 640
        Hq, Hkv, Sk, Dh = 32, 32, 8192, 192
        assert Hq % Hkv == 0, (Hq, Hkv)
        return {
            "x": _w((lambda *s: torch.randn(*s, dtype=torch.bfloat16) * 0.8)(B, Sq, D)),
            "k_cache": _w((lambda *s: torch.randn(*s, dtype=torch.bfloat16) * 0.8)(B, Hkv, Sk, Dh)),
            "v_cache": _w((lambda *s: torch.randn(*s, dtype=torch.bfloat16) * 0.05)(B, Hkv, Sk, Dh)),
            "wq": _w((lambda *s: torch.randn(*s, dtype=torch.bfloat16) * 0.8)(D, Hq * Dh) * (D ** -0.5)),
            "wo": _w((lambda *s: torch.randn(*s, dtype=torch.bfloat16) * 0.05)(Hq * Dh, D) * ((Hq * Dh) ** -0.5)),
        }
    _B_in = _B_setup()

    return {
        "A_x": _A_in["x"],
        "A_k_cache": _A_in["k_cache"],
        "A_v_cache": _A_in["v_cache"],
        "A_wq": _A_in["wq"],
        "A_wo": _A_in["wo"],
        "B_x": _B_in["x"],
        "B_k_cache": _B_in["k_cache"],
        "B_v_cache": _B_in["v_cache"],
        "B_wq": _B_in["wq"],
        "B_wo": _B_in["wo"],
    }

def reference(A_x, A_k_cache, A_v_cache, A_wq, A_wo, B_x, B_k_cache, B_v_cache, B_wq, B_wo):
    def _A_ref(x, k_cache, v_cache, wq, wo):
        B, Sq, D = x.shape
        Hq, Dh = 32, 192
        Hkv, Sk = k_cache.shape[1], k_cache.shape[2]
        W = min(4096, max(256, Sk // 4))
        rep = Hq // Hkv
        q = (lambda x, *d: x.permute(*d))((x @ wq).reshape(B, Sq, Hq, Dh), 0, 2, 1, 3)
        k = (lambda x, n, axis: torch.repeat_interleave(x, n, dim=axis))(k_cache[:, :, Sk - W:, :], rep, axis=1)
        v = (lambda x, n, axis: torch.repeat_interleave(x, n, dim=axis))(v_cache[:, :, Sk - W:, :], rep, axis=1)
        scores = torch.einsum("bhqd,bhkd->bhqk", q, k) * (Dh ** -0.5)
        p = _softmax(scores, axis=-1)
        o = torch.einsum("bhqk,bhkd->bhqd", p, v)
        return (lambda x, *d: x.permute(*d))(o, 0, 2, 1, 3).reshape(B, Sq, Hq * Dh) @ wo

    def _B_ref(x, k_cache, v_cache, wq, wo):
        B, Sq, D = x.shape
        Hq, Dh = 32, 192
        Hkv, Sk = k_cache.shape[1], k_cache.shape[2]
        W = min(4096, max(256, Sk // 4))
        rep = Hq // Hkv
        q = (lambda x, *d: x.permute(*d))((x @ wq).reshape(B, Sq, Hq, Dh), 0, 2, 1, 3)
        k = (lambda x, n, axis: torch.repeat_interleave(x, n, dim=axis))(k_cache[:, :, Sk - W:, :], rep, axis=1)
        v = (lambda x, n, axis: torch.repeat_interleave(x, n, dim=axis))(v_cache[:, :, Sk - W:, :], rep, axis=1)
        scores = torch.einsum("bhqd,bhkd->bhqk", q, k) * (Dh ** -0.5)
        p = _softmax(scores, axis=-1)
        o = torch.einsum("bhqk,bhkd->bhqd", p, v)
        return (lambda x, *d: x.permute(*d))(o, 0, 2, 1, 3).reshape(B, Sq, Hq * Dh) @ wo

    a = _A_ref(A_x, A_k_cache, A_v_cache, A_wq, A_wo)
    b = _B_ref(B_x, B_k_cache, B_v_cache, B_wq, B_wo)
    return torch.concatenate([a, b], axis=-1)
```

```python
KN = "concat_heads__sliding_block_cached__sliding_block_cached__decode_kernel"
HEADER = open("concat_heads__sliding_block_cached__sliding_block_cached__decode.s.ref").read().split("; Override launch")[0]

class Asm:
    def __init__(self):
        self.lines = []
    def __call__(self, s=""):
        for l in s.split("\n"):
            l = l.strip()
            if not l: continue
            if l.endswith(":") or l.startswith("."):
                self.lines.append(l)
            else:
                self.lines.append("    " + l)
    def text(self):
        return "\n".join(self.lines) + "\n"

def wrap(body, grid, block, lds, vgpr, sgpr=102, accum=None, name=KN, extra_desc=""):
    accum = accum if accum is not None else min(256, (vgpr + 3) // 4 * 4)
    return (HEADER + f"; @launch grid=({grid},1,1) block=({block},1,1) lds={lds}\n"
        + '.amdgcn_target "amdgcn-amd-amdhsa--gfx950"\n.text\n'
        + f".globl {name}\n.p2align 8\n.type {name},@function\n{name}:\n"
        + body
        + '.section .rodata,"a"\n.p2align 6\n'
        + f".amdhsa_kernel {name}\n  .amdhsa_next_free_vgpr {vgpr}\n  .amdhsa_next_free_sgpr {sgpr}\n  .amdhsa_accum_offset {accum}\n"
        + "  .amdhsa_group_segment_fixed_size 0\n  .amdhsa_kernarg_size 104\n  .amdhsa_user_sgpr_count 2\n"
        + "  .amdhsa_user_sgpr_kernarg_segment_ptr 1\n  .amdhsa_system_sgpr_workgroup_id_x 1\n" + extra_desc + ".end_amdhsa_kernel\n")
```

```python
import sys, math
from genlib import *

QCNT, QB, MX, LS = 0, 64, 512, 576
QP, OP, FP = 1024, 1024 + 6144, 1024 + 6144 + 12288
LDS_BYTES = FP + 10240
QSLOT, OSLOT, FSLOT = 0, 262144, 524288
WS_USED = FSLOT + 2 * 64 * 2560
STAMP_OFF = 400 * 1024 * 1024
CS = math.log2(math.e) / math.sqrt(192.0)
import struct
def f2u(x): return struct.unpack("<I", struct.pack("<f", x))[0]
SPIN = 1 << 15

def gen(stamps=False, xcd_local=True, opoll_vm=5, nt=" nt", codepf=False, wprio=3):
    a = Asm()
    def stamp(i):
        if stamps: a(f"s_memrealtime s[{80+2*i}:{81+2*i}]")
    def stamp_store():
        if not stamps: return
        a(f"""
        s_waitcnt lgkmcnt(0)
        s_mov_b64 exec, 1
        s_mul_i32 s30, s2, 12
        s_add_u32 s30, s30, s18
        s_lshl_b32 s30, s30, 6
        s_add_u32 s30, s30, {STAMP_OFF}
        v_mov_b32 v3, 0
        """)
        for q in range(4):
            for j in range(4):
                a(f"v_mov_b32 v{4+j}, s{80+4*q+j}")
            a(f"buffer_store_dwordx4 v[4:7], v3, s[68:71], s30 offen offset:{16*q}")
            a("s_nop 1")
    if stamps:
        for i in range(1, 8): a(f"s_mov_b64 s[{80+2*i}:{81+2*i}], 0")
    stamp(0)
    a("""
    s_cmp_ge_u32 s2, 256
    s_cbranch_scc1 L_end
    s_lshr_b32 s6, s2, 7
    s_mul_i32 s3, s6, 40
    s_add_u32 s20, s0, s3
    s_addc_u32 s21, s1, 0
    s_load_dwordx8 s[8:15], s[20:21], 0
    s_load_dwordx2 s[16:17], s[20:21], 32
    s_load_dwordx4 s[24:27], s[0:1], 80
    s_load_dwordx2 s[28:29], s[0:1], 96
    v_lshrrev_b32 v1, 6, v0
    """)
    if xcd_local:
        a("""
        s_and_b32 s3, s2, 7
        s_lshr_b32 s4, s2, 5
        s_lshl_b32 s4, s4, 3
        s_add_u32 s4, s4, s3
        s_lshr_b32 s5, s2, 3
        s_and_b32 s5, s5, 3
        """)
    else:
        a("""
        s_lshr_b32 s4, s2, 2
        s_and_b32 s5, s2, 3
        """)
    a(f"""
    v_readfirstlane_b32 s18, v1
    s_and_b32 s7, s4, 31
    v_subrev_u32 v2, 256, v0
    v_and_b32 v0, 63, v0
    v_lshrrev_b32 v10, 3, v0
    v_and_b32 v11, 7, v0
    s_mov_b32 s19, {f2u(CS):#x}
    s_cmp_lt_u32 s18, 4
    s_cbranch_scc1 L_wwave
    """)
    KB, VPB, SC, Q = 24, 120, 4, 12
    AM, ACC, MK = 72, 104, 116
    a(f"""
    v_mov_b32 v3, 0
    s_sub_u32 s22, s18, 4
    s_cmp_ge_u32 s22, 1
    s_cbranch_scc1 L_kv_nozero
    ds_write_b32 v3, v3 offset:{QCNT}
    L_kv_nozero:
    v_mul_u32_u24 v1, 384, v10
    v_lshl_add_u32 v1, v11, 4, v1
    s_mul_i32 s23, s22, {8*3072}
    v_add_u32 v1, s23, v1
    s_mul_i32 s22, s7, 3145728
    s_mul_i32 s23, s5, 196608
    s_add_u32 s22, s22, s23
    s_add_u32 s22, s22, {(8192-2048)*384}
    s_mov_b32 s31, 6144
    s_mov_b32 s32, 12288
    s_mov_b32 s33, 18432
    s_mov_b32 s54, 196608
    s_mov_b32 s55, 0x20000
    s_mov_b32 s58, 196608
    s_mov_b32 s59, 0x20000
    s_mov_b32 s70, {434113024 if stamps else WS_USED}
    s_mov_b32 s71, 0x20000
    s_waitcnt lgkmcnt(0)
    """)
    stamp(1)
    a(f"""
    s_add_u32 s52, s10, s22
    s_addc_u32 s53, s11, 0
    s_add_u32 s56, s12, s22
    s_addc_u32 s57, s13, 0
    s_mov_b32 s68, s28
    s_mov_b32 s69, s29
    s_barrier
    """)
    soff = ["0", "s31", "s32", "s33"]
    def kvload(srd, rs, reg):
        for j in range(3):
            a(f"buffer_load_dwordx4 v[{reg+4*j}:{reg+4*j+3}], v1, {srd}, {soff[rs//2]} offen offset:{(rs%2)*3072 + j*128}{nt}")
    for rs in range(8): kvload("s[52:55]", rs, KB + 12*rs)
    for rs in range(4): kvload("s[56:59]", rs, VPB + 12*rs)
    a(f"v_lshlrev_b32 v2, 4, v11")
    for i in range(8): a(f"v_mov_b32 v{SC+i}, 0")
    stamp(2)
    a("s_barrier")
    stamp(3)
    for j in range(3):
        a(f"ds_read_b128 v[{Q+4*j}:{Q+4*j+3}], v2 offset:{QB + 128*j}")
    a("s_waitcnt vmcnt(24) lgkmcnt(0)")
    def qk(g):
        for j in range(12):
            for t in range(4):
                rs = 4*g + t
                a(f"v_dot2c_f32_bf16 v{SC+rs}, v{KB+12*rs+j}, v{Q+j}")
    def red8(g):
        for m in ("quad_perm:[1,0,3,2]", "quad_perm:[2,3,0,1]", "row_half_mirror"):
            for t in range(4):
                r = SC + 4*g + t
                a(f"v_add_f32_dpp v{r}, v{r}, v{r} {m} row_mask:0xf bank_mask:0xf")
    qk(0)
    for rs in range(4, 8): kvload("s[56:59]", rs, KB + 12*(rs-4))
    red8(0)
    a("s_waitcnt vmcnt(24)")
    qk(1)
    red8(1)
    a(f"""
    v_max3_f32 v12, v{SC}, v{SC+1}, v{SC+2}
    v_max3_f32 v13, v{SC+3}, v{SC+4}, v{SC+5}
    v_max3_f32 v12, v12, v{SC+6}, v{SC+7}
    v_max_f32 v12, v12, v13
    s_lshl_b32 s30, s18, 2
    v_mov_b32 v17, s30
    v_max_f32_dpp v12, v12, v12 row_ror:8 row_mask:0xf bank_mask:0xf
    s_mov_b32 s36, 0
    s_brev_b32 s37, 1
    v_max_f32_dpp v12, v12, v12 row_bcast:15 row_mask:0xa bank_mask:0xf
    v_and_b32 v16, 7, v0
    s_nop 0
    v_max_f32_dpp v12, v12, v12 row_bcast:31 row_mask:0xc bank_mask:0xf
    s_mov_b64 exec, s[36:37]
    ds_write_b32 v17, v12 offset:{MX - 16}
    s_mov_b64 exec, -1
    """)
    def masks(mk, tmp, ch=11):
        a(f"""
        v_and_b32 v{tmp}, 1, v0
        v_lshlrev_b32 v{tmp}, 4, v{tmp}
        v_mov_b32 v{tmp+1}, 0xffff
        v_lshlrev_b32 v{tmp}, v{tmp}, v{tmp+1}
        v_lshrrev_b32 v{tmp+1}, 1, v{ch}
        """)
        for d in range(4):
            a(f"v_cmp_eq_u32 vcc, {d}, v{tmp+1}")
            a("s_nop 1")
            a(f"v_cndmask_b32 v{mk+d}, 0, v{tmp}, vcc")
    masks(MK, 14, 16)
    a("s_waitcnt lgkmcnt(0)")
    stamp(4)
    a(f"""
    s_barrier
    ds_read_b128 v[20:23], v3 offset:{MX}
    ds_read_b128 v[72:75], v3 offset:{MX+16}
    v_lshlrev_b32 v2, 5, v16
    v_bfe_u32 v14, v0, 4, 1
    v_lshl_add_u32 v2, v14, 4, v2
    v_lshrrev_b32 v14, 5, v0
    s_lshl_b32 s30, s18, 1
    s_sub_u32 s30, s30, 8
    v_add_u32 v14, s30, v14
    v_mul_u32_u24 v14, 768, v14
    v_add_u32 v2, v2, v14
    s_waitcnt lgkmcnt(0)
    v_max3_f32 v20, v20, v21, v22
    v_max3_f32 v72, v72, v73, v74
    v_max3_f32 v20, v20, v23, v75
    v_max_f32 v18, v20, v72
    v_mul_f32 v12, s19, v18
    """)
    for i in range(8): a(f"v_fma_f32 v{SC+i}, v{SC+i}, s19, -v12")
    for i in range(8): a(f"v_exp_f32 v{SC+i}, v{SC+i}")
    a(f"""
    v_add_f32 v12, v{SC}, v{SC+1}
    v_add_f32 v13, v{SC+2}, v{SC+3}
    v_add_f32 v14, v{SC+4}, v{SC+5}
    v_add_f32 v15, v{SC+6}, v{SC+7}
    v_add_f32 v12, v12, v13
    v_add_f32 v14, v14, v15
    v_add_f32 v12, v12, v14
    s_nop 1
    v_add_f32_dpp v12, v12, v12 row_ror:8 row_mask:0xf bank_mask:0xf
    s_nop 1
    v_add_f32_dpp v12, v12, v12 row_bcast:15 row_mask:0xa bank_mask:0xf
    s_nop 1
    v_add_f32_dpp v12, v12, v12 row_bcast:31 row_mask:0xc bank_mask:0xf
    s_mov_b64 exec, s[36:37]
    ds_write_b32 v17, v12 offset:{LS - 16}
    s_mov_b64 exec, -1
    """)
    for i in range(8):
        a(f"v_cvt_pk_bf16_f32 v{SC+i}, v{SC+i}, v{SC+i}")
    for i in range(8):
        for d in range(4):
            a(f"v_and_b32 v{AM+4*i+d}, v{MK+d}, v{SC+i}")
    for rs in range(8):
        vb = VPB + 12*rs if rs < 4 else KB + 12*(rs-4)
        if rs == 0: a("s_waitcnt vmcnt(12)")
        if rs >= 4: a(f"s_waitcnt vmcnt({3*(7-rs)})")
        if rs == 7: stamp(5)
        for j in range(3):
            c = "0" if rs == 0 else f"v[{ACC+4*j}:{ACC+4*j+3}]"
            a(f"v_mfma_f32_16x16x32_bf16 v[{ACC+4*j}:{ACC+4*j+3}], v[{AM+4*rs}:{AM+4*rs+3}], v[{vb+4*j}:{vb+4*j+3}], {c}")
    a("""
    s_mov_b32 s34, 0x00ff00ff
    s_mov_b32 s35, 0xff00ff00
    s_nop 5
    s_mov_b64 exec, s[34:35]
    """)
    for j in range(3):
        a(f"ds_write_b128 v2, v[{ACC+4*j}:{ACC+4*j+3}] offset:{OP + 256*j}")
    a("s_mov_b64 exec, -1")
    a(f"""
    s_sub_u32 s22, s18, 4
    s_lshl_b32 s23, s22, 8
    v_lshl_add_u32 v2, v0, 2, s23
    s_lshl_b32 s30, s4, 2
    s_add_u32 s30, s30, s5
    s_lshl_b32 s30, s30, 10
    s_add_u32 s30, s30, {OSLOT}
    s_waitcnt lgkmcnt(0)
    """)
    stamp(6)
    a(f"""
    s_barrier
    s_cmp_gt_u32 s22, 3
    s_cbranch_scc1 L_kv_end
    s_cmp_eq_u32 s22, 3
    s_cbranch_scc1 L_kv_ml
    """)
    for i in range(16):
        a(f"ds_read_b32 v{24+i}, v2 offset:{OP + 768*i}")
    for lvl, n in ((1, 8), (2, 4), (4, 2), (8, 1)):
        for i in range(n):
            if lvl == 1: a(f"s_waitcnt lgkmcnt({14 - 2*i})")
            a(f"v_add_f32 v{24+2*lvl*i}, v{24+2*lvl*i}, v{24+2*lvl*i+lvl}")
    a(f"""
    v_min_u32 v24, -2, v24
    buffer_store_dword v24, v2, s[68:71], s30 offen sc1
    s_branch L_kv_end
    L_kv_ml:
    s_mov_b64 exec, 1
    ds_read_b128 v[24:27], v3 offset:{LS}
    ds_read_b128 v[28:31], v3 offset:{LS+16}
    s_waitcnt lgkmcnt(0)
    v_add_f32 v24, v24, v25
    v_add_f32 v26, v26, v27
    v_add_f32 v28, v28, v29
    v_add_f32 v30, v30, v31
    v_add_f32 v24, v24, v26
    v_add_f32 v28, v28, v30
    v_add_f32 v19, v24, v28
    v_min_u32 v18, -2, v18
    v_min_u32 v19, -2, v19
    buffer_store_dwordx2 v[18:19], v3, s[68:71], s30 offen offset:768 sc1
    L_kv_end:
    """)
    stamp(7)
    stamp_store()
    a("s_endpgm")
    X, A0, WACC, WMK, WD = 4, 12, 16, 36, 40
    a(f"""
    L_wwave:
    ; ---- W wave: s18 = 0..3
    s_setprio {wprio}
    v_mul_u32_u24 v1, 12288, v10
    v_lshl_add_u32 v1, v11, 4, v1
    v_lshlrev_b32 v9, 1, v10
    v_lshlrev_b32 v2, 4, v0
    v_mov_b32 v100, -1
    v_mov_b32 v101, -1
    v_mov_b32 v102, -1
    v_mov_b32 v103, -1
    s_mul_i32 s22, s5, {160*12288}
    s_mul_i32 s23, s7, 384
    s_add_u32 s22, s22, s23
    s_mul_i32 s36, s5, 320
    s_mul_i32 s23, s18, 80
    s_add_u32 s36, s36, s23
    s_mul_i32 s37, s18, {5*8*12288}
    s_lshl_b32 s30, s4, 2
    s_add_u32 s30, s30, s5
    s_mul_i32 s38, s30, 768
    s_lshl_b32 s39, s30, 10
    s_add_u32 s39, s39, {OSLOT}
    s_lshl_b32 s30, s4, 1
    s_and_b32 s31, s5, 1
    s_add_u32 s30, s30, s31
    s_mul_i32 s40, s30, 2560
    s_lshr_b32 s31, s5, 1
    s_mul_i32 s31, s31, 1280
    s_add_u32 s40, s40, s31
    s_add_u32 s40, s40, {FSLOT}
    s_add_u32 s41, s40, 1024
    s_mov_b32 s42, 16
    s_cmp_eq_u32 s18, 2
    s_cselect_b32 s41, s40, s41
    s_cselect_b32 s42, 64, s42
    s_cmp_eq_u32 s18, 1
    s_cselect_b32 s41, s39, s41
    s_cselect_b32 s42, 64, s42
    s_cmp_eq_u32 s18, 0
    s_cselect_b32 s41, s38, s41
    s_cselect_b32 s42, 48, s42
    v_cmp_gt_u32 vcc, s42, v0
    s_mov_b32 s50, 1280
    s_mov_b32 s51, 0x20000
    s_mov_b32 s62, {159*12288+384}
    s_mov_b32 s63, 0x20000
    s_mov_b32 s70, {434113024 if stamps else WS_USED}
    s_mov_b32 s71, 0x20000
    s_waitcnt lgkmcnt(0)
    """)
    stamp(1)
    a(f"""
    s_mov_b32 s48, s8
    s_mov_b32 s49, s9
    s_add_u32 s60, s14, s22
    s_addc_u32 s61, s15, 0
    s_mov_b32 s68, s28
    s_mov_b32 s69, s29
    """)
    for i in range(5):
        a(f"buffer_load_ushort v{X+i}, v9, s[48:51], s36 offen offset:{16*i}")
    for i in range(5):
        for j in range(3):
            a(f"buffer_load_dwordx4 v[{WD+12*i+4*j}:{WD+12*i+4*j+3}], v1, s[60:63], s37 offen offset:{128*j}{nt}")
        if i < 4: a(f"s_add_u32 s37, s37, {8*12288}")
    a(f"""
    s_mov_b64 exec, vcc
    buffer_store_dwordx4 v[100:103], v2, s[68:71], s41 offen sc1
    s_mov_b64 exec, -1
    s_barrier
    s_mul_i32 s22, s7, 192
    s_and_b32 s23, s5, 1
    s_mul_i32 s23, s23, 96
    s_add_u32 s22, s22, s23
    s_mul_i32 s22, s22, 1280
    s_lshr_b32 s23, s5, 1
    s_mul_i32 s23, s23, 640
    s_add_u32 s22, s22, s23
    s_add_u32 s64, s16, s22
    s_addc_u32 s65, s17, 0
    s_mov_b32 s66, {95*1280+640}
    s_mov_b32 s67, 0x20000
    s_mov_b32 s72, s26
    s_mov_b32 s73, s27
    s_mov_b32 s74, 256
    s_mov_b32 s75, 0x20000
    s_mov_b32 s76, s24
    s_mov_b32 s77, s25
    s_mov_b32 s78, 2560
    s_mov_b32 s79, 0x20000
    s_mov_b32 s34, 0x00ff00ff
    s_mov_b32 s35, 0xff00ff00
    """)
    masks(WMK, 104)
    a(f"""
    v_lshlrev_b32 v3, 5, v11
    v_bfe_u32 v104, v0, 4, 1
    v_lshl_add_u32 v3, v104, 4, v3
    v_lshrrev_b32 v104, 5, v0
    s_lshl_b32 s30, s18, 1
    v_add_u32 v104, s30, v104
    v_mul_u32_u24 v105, 1280, v104
    v_mul_u32_u24 v104, 768, v104
    v_add_u32 v128, v3, v105
    v_add_u32 v3, v3, v104
    """)
    for i in range(5):
        a(f"s_waitcnt vmcnt({1 + 3*(4-i)})")
        a(f"v_lshl_or_b32 v104, v{X+i}, 16, v{X+i}")
        for d in range(4):
            a(f"v_and_b32 v{A0+d}, v{WMK+d}, v104")
        a("s_nop 1")
        for j in range(3):
            c = "0" if i == 0 else f"v[{WACC+4*j}:{WACC+4*j+3}]"
            a(f"v_mfma_f32_16x16x32_bf16 v[{WACC+4*j}:{WACC+4*j+3}], v[{A0}:{A0+3}], v[{WD+12*i+4*j}:{WD+12*i+4*j+3}], {c}")
    stamp(2)
    a("""
    s_waitcnt vmcnt(0)
    s_nop 5
    s_mov_b64 exec, s[34:35]
    """)
    for j in range(3):
        a(f"ds_write_b128 v3, v[{WACC+4*j}:{WACC+4*j+3}] offset:{QP + 256*j}")
    a(f"""
    s_mov_b64 exec, 1
    v_mov_b32 v104, 0
    v_mov_b32 v105, 1
    ds_add_rtn_u32 v106, v104, v105 offset:{QCNT}
    s_waitcnt lgkmcnt(0)
    v_readfirstlane_b32 s30, v106
    s_cmp_lg_u32 s30, 3
    s_cbranch_scc1 L_w_qdone
    s_lshl_b32 s31, s4, 2
    buffer_atomic_add v105, v104, s[72:75], s31 offen sc1
    s_mov_b32 exec_lo, -1
    s_mov_b32 exec_hi, 0xffff
    """)
    for i in range(8):
        a(f"ds_read_b128 v[{40+4*i}:{43+4*i}], v2 offset:{QP + 768*i}")
    a("v_lshlrev_b32 v104, 2, v0")
    a("s_waitcnt lgkmcnt(0)")
    for lvl, n in ((1, 4), (2, 2), (4, 1)):
        for i in range(n):
            for r in range(4):
                d = 40 + 8*lvl*i + r
                a(f"v_add_f32 v{100+r if lvl == 4 else d}, v{d}, v{d+4*lvl}")
    a(f"""
    v_min_u32 v100, -2, v100
    v_min_u32 v101, -2, v101
    v_min_u32 v102, -2, v102
    v_min_u32 v103, -2, v103
    buffer_store_dwordx4 v[100:103], v2, s[68:71], s38 offen sc1
    s_lshl_b32 s31, s6, 7
    s_mov_b32 s43, {SPIN}
    s_mov_b32 exec_hi, 0
    L_w_flag:
    buffer_load_dword v105, v104, s[72:75], s31 offen sc1
    s_sub_u32 s43, s43, 1
    s_cbranch_scc1 L_w_flag_done
    s_waitcnt vmcnt(0)
    v_cmp_ne_u32 vcc, 4, v105
    s_cbranch_vccnz L_w_flag
    L_w_flag_done:
    {"s_memrealtime s[82:83]" if stamps else ""}
    s_mov_b32 exec_hi, 0xffff
    s_mul_i32 s31, s4, 3072
    s_mov_b32 s43, {SPIN}
    L_w_qpoll:
    """)
    for cc in range(4):
        a(f"buffer_load_dwordx4 v[{40+4*cc}:{43+4*cc}], v2, s[68:71], s31 offen offset:{768*cc} sc1")
    a(f"""
    s_sub_u32 s43, s43, 1
    s_cbranch_scc1 L_w_qpoll_done
    s_waitcnt vmcnt(0)
    v_max3_u32 v56, v40, v41, v42
    v_max3_u32 v57, v43, v44, v45
    v_max3_u32 v58, v46, v47, v48
    v_max3_u32 v59, v49, v50, v51
    v_max3_u32 v60, v52, v53, v54
    v_max3_u32 v56, v56, v57, v55
    v_max3_u32 v58, v58, v59, v60
    v_max_u32 v56, v56, v58
    v_cmp_eq_u32 vcc, -1, v56
    s_cbranch_vccnz L_w_qpoll
    L_w_qpoll_done:
    s_waitcnt vmcnt(0)
    """)
    for j in range(4):
        a(f"v_add_f32 v{40+j}, v{40+j}, v{44+j}")
        a(f"v_add_f32 v{48+j}, v{48+j}, v{52+j}")
    for j in range(4):
        a(f"v_add_f32 v{40+j}, v{40+j}, v{48+j}")
    a(f"""
    v_cvt_pk_bf16_f32 v40, v40, v41
    v_cvt_pk_bf16_f32 v41, v42, v43
    v_lshlrev_b32 v104, 3, v0
    ds_write_b64 v104, v[40:41] offset:{QB}
    s_waitcnt lgkmcnt(0)
    L_w_qdone:
    s_mov_b64 exec, -1
    """)
    stamp(3)
    a(f"""
    s_barrier
    v_mul_u32_u24 v1, 1280, v10
    v_lshl_add_u32 v1, v11, 4, v1
    s_mul_i32 s30, s18, {24*1280}
    v_add_u32 v1, s30, v1
    s_mov_b32 s31, {8*1280}
    s_mov_b32 s32, {16*1280}
    v_and_b32 v104, 3, v0
    v_lshlrev_b32 v106, 10, v104
    v_lshl_add_u32 v105, v10, 2, v106
    v_bfe_u32 v104, v0, 2, 1
    v_lshl_add_u32 v104, v104, 5, v105
    s_lshl_b32 s44, s4, 12
    s_add_u32 s44, s44, {OSLOT}
    s_and_b32 s45, s5, 1
    s_mul_i32 s45, s45, 384
    s_mul_i32 s30, s18, 96
    s_add_u32 s45, s45, s30
    s_add_u32 s45, s45, s44
    s_barrier
    """)
    stamp(4)
    so = ["0", "s31", "s32"]
    for k in range(3):
        for j in range(5):
            a(f"buffer_load_dwordx4 v[{WD+20*k+4*j}:{WD+20*k+4*j+3}], v1, s[64:67], {so[k]} offen offset:{128*j}{nt}")
    a(f"""
    s_lshl_b32 s30, s18, 6
    v_add_u32 v107, s30, v0
    v_cmp_gt_u32 vcc, 160, v107
    v_lshlrev_b32 v107, 3, v107
    s_mov_b64 s[46:47], vcc
    s_mov_b32 s43, {SPIN}
    s_barrier
    """)
    stamp(5)
    a(f"""
    s_waitcnt vmcnt({opoll_vm})
    L_w_opoll:
    buffer_load_dword v108, v104, s[68:71], s45 offen sc1
    buffer_load_dword v109, v105, s[68:71], s45 offen offset:64 sc1
    buffer_load_dwordx2 v[110:111], v106, s[68:71], s44 offen offset:768 sc1
    s_sub_u32 s43, s43, 1
    s_cbranch_scc1 L_w_opoll_done
    s_waitcnt vmcnt(0)
    v_max3_u32 v112, v108, v109, v110
    v_max_u32 v112, v112, v111
    v_cmp_eq_u32 vcc, -1, v112
    s_cbranch_vccnz L_w_opoll
    L_w_opoll_done:
    s_waitcnt vmcnt(0)
    """)
    stamp(6)
    X1, X2 = "quad_perm:[1,0,3,2] row_mask:0xf bank_mask:0xf", "quad_perm:[2,3,0,1] row_mask:0xf bank_mask:0xf"
    a(f"""
    v_max_f32_dpp v112, v110, v110 {X1}
    s_nop 1
    v_max_f32_dpp v112, v112, v112 {X2}
    v_sub_f32 v112, v110, v112
    v_mul_f32 v112, s19, v112
    v_exp_f32 v112, v112
    s_nop 0
    v_mul_f32 v111, v112, v111
    v_mul_f32 v108, v112, v108
    v_mul_f32 v109, v112, v109
    v_add_f32_dpp v111, v111, v111 {X1}
    v_add_f32_dpp v108, v108, v108 {X1}
    v_add_f32_dpp v109, v109, v109 {X1}
    v_add_f32_dpp v111, v111, v111 {X2}
    v_add_f32_dpp v108, v108, v108 {X2}
    v_add_f32_dpp v109, v109, v109 {X2}
    v_rcp_f32 v111, v111
    s_nop 0
    v_mul_f32 v108, v108, v111
    v_mul_f32 v109, v109, v111
    v_cvt_pk_bf16_f32 v108, v108, v108
    v_cvt_pk_bf16_f32 v114, v109, v109
    v_mov_b32 v112, v108
    v_mov_b32 v113, v108
    v_mov_b32_dpp v112, v108 row_shr:4 row_mask:0xf bank_mask:0xa
    v_mov_b32_dpp v113, v108 row_shl:4 row_mask:0xf bank_mask:0x5
    """)
    AK = 116
    for k in range(3):
        for d in range(4):
            a(f"v_and_b32 v{AK+4*k+d}, v{WMK+d}, v{112+k}")
    for k in range(3):
        for j in range(5):
            c = "0" if k == 0 else f"v[{WACC+4*j}:{WACC+4*j+3}]"
            a(f"v_mfma_f32_16x16x32_bf16 v[{WACC+4*j}:{WACC+4*j+3}], v[{AK+4*k}:{AK+4*k+3}], v[{WD+20*k+4*j}:{WD+20*k+4*j+3}], {c}")
    a("""
    s_nop 6
    s_mov_b64 exec, s[34:35]
    """)
    for j in range(5):
        a(f"ds_write_b128 v128, v[{WACC+4*j}:{WACC+4*j+3}] offset:{FP + 256*j}")
    a(f"""
    s_mov_b64 exec, -1
    s_waitcnt lgkmcnt(0)
    s_barrier
    s_cmp_eq_u32 s18, 3
    s_cbranch_scc1 L_w_reduce
    s_mov_b64 exec, s[46:47]
    """)
    for i in range(8):
        a(f"ds_read_b64 v[{40+2*i}:{41+2*i}], v107 offset:{FP + 1280*i}")
    for lvl, n in ((1, 4), (2, 2), (4, 1)):
        for i in range(n):
            if lvl == 1: a(f"s_waitcnt lgkmcnt({6 - 2*i})")
            for r in range(2):
                d = 40 + 4*lvl*i + r
                a(f"v_add_f32 v{d}, v{d}, v{d+2*lvl}")
    a(f"""
    v_min_u32 v40, -2, v40
    v_min_u32 v41, -2, v41
    buffer_store_dwordx2 v[40:41], v107, s[68:71], s40 offen sc1
    s_branch L_w_end
    L_w_reduce:
    s_lshl_b32 s30, s5, 5
    s_add_u32 s30, s30, s7
    s_cmp_ge_u32 s30, 40
    s_cbranch_scc1 L_w_end
    v_lshrrev_b32 v104, 2, v0
    v_mul_u32_u24 v104, 2560, v104
    v_and_b32 v105, 3, v0
    v_lshl_add_u32 v104, v105, 4, v104
    s_mul_i32 s44, s6, {64*2560}
    s_lshl_b32 s31, s30, 6
    s_add_u32 s44, s44, s31
    s_add_u32 s44, s44, {FSLOT}
    s_add_u32 s45, s44, {16*2560}
    s_add_u32 s46, s44, {32*2560}
    s_add_u32 s47, s44, {48*2560}
    s_mov_b32 s43, {SPIN}
    L_w_fpoll:
    buffer_load_dwordx4 v[40:43], v104, s[68:71], s44 offen sc1
    buffer_load_dwordx4 v[44:47], v104, s[68:71], s45 offen sc1
    buffer_load_dwordx4 v[48:51], v104, s[68:71], s46 offen sc1
    buffer_load_dwordx4 v[52:55], v104, s[68:71], s47 offen sc1
    s_sub_u32 s43, s43, 1
    s_cbranch_scc1 L_w_fpoll_done
    s_waitcnt vmcnt(0)
    v_max3_u32 v56, v40, v41, v42
    v_max3_u32 v57, v43, v44, v45
    v_max3_u32 v58, v46, v47, v48
    v_max3_u32 v59, v49, v50, v51
    v_max3_u32 v60, v52, v53, v54
    v_max3_u32 v56, v56, v57, v55
    v_max3_u32 v58, v58, v59, v60
    v_max_u32 v56, v56, v58
    v_cmp_eq_u32 vcc, -1, v56
    s_cbranch_vccnz L_w_fpoll
    L_w_fpoll_done:
    s_waitcnt vmcnt(0)
    """)
    for j in range(4):
        a(f"v_add_f32 v{40+j}, v{40+j}, v{44+j}")
        a(f"v_add_f32 v{48+j}, v{48+j}, v{52+j}")
    for j in range(4):
        a(f"v_add_f32 v{40+j}, v{40+j}, v{48+j}")
    a(f"""
    v_bfe_u32 v106, v0, 4, 1
    v_lshrrev_b32 v107, 5, v0
    """)
    for m in ("row_ror:4", "row_ror:8"):
        for j in range(4):
            a(f"v_add_f32_dpp v{40+j}, v{40+j}, v{40+j} {m} row_mask:0xf bank_mask:0xf")
    a(f"""
    v_lshl_add_u32 v106, v106, 1, v107
    v_lshl_add_u32 v106, v105, 2, v106
    v_permlane32_swap_b32 v40, v41
    v_permlane32_swap_b32 v42, v43
    s_mul_i32 s31, s6, 1280
    v_add_f32 v40, v40, v41
    v_add_f32 v42, v42, v43
    s_lshl_b32 s30, s30, 5
    v_lshlrev_b32 v106, 1, v106
    v_permlane16_swap_b32 v40, v42
    s_add_u32 s31, s31, s30
    v_add_f32 v40, v40, v42
    v_cvt_pk_bf16_f32 v40, v40, v40
    s_mov_b32 exec_lo, 0x000f000f
    s_mov_b32 exec_hi, 0x000f000f
    buffer_store_short v40, v106, s[76:79], s31 offen
    L_w_end:
    """)
    stamp(7)
    stamp_store()
    a("L_end:\ns_endpgm")
    return wrap(a.text(), 256, 768, LDS_BYTES, 168, 96, extra_desc="  .amdhsa_float_denorm_mode_32 3\n")

if __name__ == "__main__":
    open("v1.s", "w").write(gen())
    open("v1_st.s", "w").write(gen(stamps=True))
```
